```python
import torch

def _softmax(x, axis=-1):
    return torch.softmax(x, dim=axis)
def _gelu(x):
    return torch.nn.functional.gelu(x, approximate="tanh")
def _silu(x):
    return torch.nn.functional.silu(x)
def _sigmoid(x):
    return torch.sigmoid(x)
def _layernorm(x, axis=-1, eps=1e-5):
    m = x.mean(dim=axis, keepdim=True)
    v = x.var(dim=axis, keepdim=True, unbiased=False)
    return (x - m) / torch.sqrt(v + eps)
def _scatter_add(tgt, idx, src, axis=0):
    return tgt.clone().index_add_(axis, idx, src)
def _segment_sum(src, seg, n):
    out = torch.zeros((n,) + src.shape[1:], dtype=src.dtype)
    return out.index_add_(0, seg, src)
def _pad(x, pw):
    flat = tuple(v for pair in reversed(pw) for v in pair)
    return torch.nn.functional.pad(x, flat)

kernel_name = 'standalone__mha_softmax__near_ridge'

def setup_inputs():

    _w = (lambda a: (lambda t: t.to(torch.bfloat16) if t.is_floating_point() else t)(torch.as_tensor(a)))
    B, H, Sq, Sk, D = 16, 32, 496, 512, 128
    return {
        "q": _w((lambda *s: torch.randn(*s, dtype=torch.bfloat16) * 0.8)(B, H, Sq, D)),
        "k": _w((lambda *s: torch.randn(*s, dtype=torch.bfloat16) * 0.8)(B, H, Sk, D)),
        "v": _w((lambda *s: torch.randn(*s, dtype=torch.bfloat16) * 0.05)(B, H, Sk, D)),
    }

def reference(q, k, v):
    scale = q.shape[-1] ** -0.5
    scores = torch.einsum("bhqd,bhkd->bhqk", q, k) * scale
    p = _softmax(scores, axis=-1)
    return torch.einsum("bhqk,bhkd->bhqd", p, v)
```

```python
class Ins:
    __slots__ = ('text', 'kind', 'rd', 'wr', 'tag', 'needs', 'cexact', 'n', 'note', 'ws')

    def __init__(self, text, kind, rd=(), wr=(), tag=None, needs=None, cexact=None, note=None, ws=1):
        self.text = text
        self.kind = kind
        self.rd = tuple(rd)
        self.wr = tuple(wr)
        self.tag = tag
        self.needs = needs
        self.cexact = cexact
        self.n = None
        self.note = note
        self.ws = ws

    def __repr__(self):
        return f"<{self.kind}: {self.text}>"


def R(k, n, cnt=1):
    return [f"{k}{n + i}" for i in range(cnt)]


def T(k, n, cnt=1):
    return f"{k}{n}" if cnt == 1 else f"{k}[{n}:{n + cnt - 1}]"


def mfma(dk, d, ak, a, bk, b, czero=False):
    D = R(dk, d, 16)
    txt = f"v_mfma_f32_32x32x16_bf16 {T(dk, d, 16)}, {T(ak, a, 4)}, {T(bk, b, 4)}, " + ("0" if czero else T(dk, d, 16))
    return Ins(txt, 'mfma', rd=R(ak, a, 4) + R(bk, b, 4) + ([] if czero else D), wr=D, cexact=None if czero else tuple(D))


def valu(text, rd, wr, kind='valu'):
    return Ins(text, kind, rd=rd, wr=wr)


def salu(text, rd=(), wr=()):
    return Ins(text, 'salu', rd=rd, wr=wr)


def ds_read(width, dk, d, addr, off, tag=None):
    cnt = {'b128': 4, 'b64_tr_b16': 2, 'b64': 2, 'b32': 1}[width]
    o = f" offset:{off}" if off else ""
    return Ins(f"ds_read_{width} {T(dk, d, cnt)}, v{addr}{o}", 'ds', rd=[f"v{addr}"], wr=R(dk, d, cnt), tag=tag)


def ds_write(width, addr, sk, s, off, tag=None):
    cnt = {'b128': 4, 'b64': 2, 'b32': 1}[width]
    o = f" offset:{off}" if off else ""
    return Ins(f"ds_write_{width} v{addr}, {T(sk, s, cnt)}{o}", 'ds', rd=[f"v{addr}"] + R(sk, s, cnt), tag=tag)


def dma(voff, srd, soff, off, pol, tag=None):
    o = f" offset:{off}" if off else ""
    p = f" {pol}" if pol else ""
    rd = [f"v{voff}", 'm0'] + R('s', srd, 4) + ([soff] if isinstance(soff, str) and soff.startswith('s') else [])
    return Ins(f"buffer_load_dwordx4 v{voff}, {T('s', srd, 4)}, {soff} offen{o}{p} lds", 'vmem', rd=rd, tag=tag, note='dma')


def bstore(sk, s, voff, srd, soff, off, pol, tag=None):
    o = f" offset:{off}" if off else ""
    p = f" {pol}" if pol else ""
    rd = [f"v{voff}"] + R(sk, s, 4) + R('s', srd, 4) + ([soff] if isinstance(soff, str) and soff.startswith('s') else [])
    return Ins(f"buffer_store_dwordx4 {T(sk, s, 4)}, v{voff}, {T('s', srd, 4)}, {soff} offen{o}{p}", 'vmem', rd=rd, tag=tag, note='store')


def bload(dk, d, voff, srd, soff, off, pol='', tag=None):
    o = f" offset:{off}" if off else ""
    p = f" {pol}" if pol else ""
    rd = [f"v{voff}"] + R('s', srd, 4) + ([soff] if isinstance(soff, str) and soff.startswith('s') else [])
    return Ins(f"buffer_load_dwordx4 {T(dk, d, 4)}, v{voff}, {T('s', srd, 4)}, {soff} offen{o}{p}", 'vmem', rd=rd, wr=R(dk, d, 4), tag=tag, note='load')


def wait(l=None, v=None, l0=False, v0=False):
    return Ins("", 'wait', needs={'l': list(l or []), 'v': list(v or []), 'l0': l0, 'v0': v0})


def label(name):
    return Ins(f"{name}:", 'label', ws=0)


def raw(text, kind='raw', ws=1):
    return Ins(text, kind, ws=ws)


def nop(n):
    return Ins(f"s_nop {n}", 'nop', ws=n + 1)


def barrier():
    return Ins("s_barrier", 'bar')


def resolve_waits(paths):
    res = {}
    for seq in paths:
        lq, vq = [], []
        for ins in seq:
            if ins.kind == 'ds':
                lq.append(ins.tag)
            elif ins.kind == 'vmem':
                vq.append(ins.tag)
            elif ins.kind == 'wait':
                nd = ins.needs
                ln = vn = None
                if nd['l0']:
                    ln = 0
                else:
                    idx = [i for i, t in enumerate(lq) if t is not None and t in nd['l']]
                    if idx:
                        ln = len(lq) - 1 - max(idx)
                if nd['v0']:
                    vn = 0
                else:
                    for want in nd['v']:
                        idx = [i for i, t in enumerate(vq) if t == want]
                        if idx:
                            c = len(vq) - 1 - max(idx)
                            vn = c if vn is None else min(vn, c)
                cur = res.get(id(ins), (None, None))
                if ln is not None:
                    ln = min(ln, 15)
                if vn is not None:
                    vn = min(vn, 63)
                nl = ln if cur[0] is None else (cur[0] if ln is None else min(cur[0], ln))
                nv = vn if cur[1] is None else (cur[1] if vn is None else min(cur[1], vn))
                res[id(ins)] = (nl, nv)
                if ln is not None:
                    lq = lq[len(lq) - ln:] if ln > 0 else []
                if vn is not None:
                    vq = vq[len(vq) - vn:] if vn > 0 else []
    return res


def apply_waits(seq, res):
    for ins in seq:
        if ins.kind == 'wait':
            ln, vn = res.get(id(ins), (None, None))
            parts = []
            if vn is not None:
                parts.append(f"vmcnt({vn})")
            if ln is not None:
                parts.append(f"lgkmcnt({ln})")
            ins.text = "s_waitcnt " + " ".join(parts) if parts else ""
            ins.ws = 1 if parts else 0


VALU_KINDS = ('valu', 'trans', 'pk', 'perm')


def check_hazards(seq, name=""):
    probs = []
    last_mfma_w = {}
    last_valu_w = {}
    last_trans_w = {}
    last_salu_m0 = None
    last_valu_sgpr = {}
    last_mfma_c = {}
    last_store = {}
    pos = 0

    def dist(p):
        return pos - p - 1

    for ins in seq:
        if ins.ws == 0:
            continue
        k = ins.kind
        rd, wr = set(ins.rd), set(ins.wr)
        if k == 'mfma':
            cset = set(ins.cexact or ())
            for r in rd:
                if r in last_mfma_w:
                    p, dtuple = last_mfma_w[r]
                    if r in cset and not (r in rd - cset and False):
                        if ins.cexact == dtuple:
                            need = 0
                        else:
                            need = 10
                    else:
                        need = 12
                    if dist(p) < need:
                        probs.append(f"{name}: MFMA->MFMA {r} dist {dist(p)} < {need}: {ins.text}")
                if r in last_valu_w and dist(last_valu_w[r]) < 2:
                    probs.append(f"{name}: VALU->MFMA {r} dist {dist(last_valu_w[r])} < 2: {ins.text}")
        elif k in VALU_KINDS or k in ('ds', 'vmem'):
            for r in rd | wr:
                if r in last_mfma_w and dist(last_mfma_w[r][0]) < 12:
                    probs.append(f"{name}: MFMA D -> {k} {r} dist {dist(last_mfma_w[r][0])} < 12: {ins.text}")
            if k in VALU_KINDS:
                for r in rd:
                    if r in last_trans_w and k != 'trans' and dist(last_trans_w[r]) < 1:
                        probs.append(f"{name}: trans->VALU {r}: {ins.text}")
                    if r in last_trans_w and k == 'trans' and dist(last_trans_w[r]) < 1:
                        probs.append(f"{name}: trans->trans {r} (padded for safety): {ins.text}")
                    if k == 'perm' and r in last_valu_w and dist(last_valu_w[r]) < 2:
                        probs.append(f"{name}: VALU->permlane {r}: {ins.text}")
                    if r in last_valu_sgpr and dist(last_valu_sgpr[r]) < 2:
                        probs.append(f"{name}: VALU sgpr -> VALU const {r}: {ins.text}")
                for r in wr:
                    if r in last_mfma_c and dist(last_mfma_c[r]) < 7:
                        probs.append(f"{name}: MFMA C WAR {r}: {ins.text}")
                    if r in last_store and dist(last_store[r]) < 2:
                        probs.append(f"{name}: store data WAR {r}: {ins.text}")
            if k == 'vmem':
                if ins.note == 'dma' and last_salu_m0 is not None and dist(last_salu_m0) < 1:
                    probs.append(f"{name}: m0 -> dma: {ins.text}")
                for r in rd:
                    if r in last_valu_sgpr and dist(last_valu_sgpr[r]) < 5:
                        probs.append(f"{name}: VALU sgpr -> VMEM {r}: {ins.text}")
            if k == 'ds' or k == 'vmem':
                for r in wr:
                    if r in last_store and dist(last_store[r]) < 1:
                        probs.append(f"{name}: store data WAR(mem) {r}: {ins.text}")
        elif k == 'salu':
            for r in rd:
                if r in last_valu_sgpr and dist(last_valu_sgpr[r]) < 4:
                    probs.append(f"{name}: VALU sgpr -> SALU {r} (padded for safety): {ins.text}")
        if k == 'mfma':
            for r in wr:
                last_mfma_w[r] = (pos, tuple(ins.wr))
            for r in (ins.cexact or ()):
                last_mfma_c[r] = pos
        elif k in VALU_KINDS:
            for r in wr:
                if r.startswith('s') or r == 'vcc':
                    last_valu_sgpr[r] = pos
                else:
                    last_valu_w[r] = pos
                    last_mfma_w.pop(r, None)
                    if k == 'trans':
                        last_trans_w[r] = pos
                    else:
                        last_trans_w.pop(r, None)
        elif k == 'salu':
            if 'm0' in wr:
                last_salu_m0 = pos
            for r in wr:
                last_valu_sgpr.pop(r, None)
        if k == 'vmem' and ins.note == 'store':
            for r in ins.rd:
                if r[0] in 'va':
                    last_store[r] = pos
        if k == 'ds' and ins.text.startswith('ds_write'):
            pass
        pos += ins.ws
    return probs


def check_dataflow(seq, name=""):
    probs = []
    lq, vq = [], []
    import re
    for ins in seq:
        if ins.kind == 'wait' and ins.text:
            m = re.search(r'lgkmcnt\((\d+)\)', ins.text)
            if m:
                n = int(m.group(1))
                lq = lq[len(lq) - n:] if n > 0 and len(lq) > n else (lq if n > 0 else [])
            m = re.search(r'vmcnt\((\d+)\)', ins.text)
            if m:
                n = int(m.group(1))
                vq = vq[len(vq) - n:] if n > 0 and len(vq) > n else (vq if n > 0 else [])
            continue
        touched = set(ins.rd) | set(ins.wr)
        if ins.kind in ('mfma', 'ds', 'vmem') + VALU_KINDS:
            for q, nm in ((lq, 'lgkm'), (vq, 'vm')):
                for w in q:
                    hit = w & touched
                    if hit:
                        probs.append(f"{name}: use of {sorted(hit)[:2]} while {nm} op outstanding: {ins.text}")
                        break
        if ins.kind == 'ds':
            lq.append(set(ins.wr))
        elif ins.kind == 'vmem':
            vq.append(set(ins.wr))
    return probs


COST = {'valu': 4, 'trans': 8, 'pk': 4, 'perm': 8, 'ds': 4, 'vmem': 8}


def text_of(seq):
    out = []
    for ins in seq:
        if ins.kind == 'wait' and not ins.text:
            continue
        if ins.kind == 'label':
            out.append(ins.text)
        else:
            out.append("    " + ins.text)
    return "\n".join(out) + "\n"
```

```python
import sys
import argparse
from asmlib import *

NAME = "standalone__mha_softmax__near_ridge_kernel"

O_BASE = 0
S_BASE = 128
KA = 192
VA = 200
QA = 204
VOFFK = 212
VOFFP = 214
VOFFV = 218
ORA = 219
LS = 220
MC = 222
RL = 224
LT = 228
TMP = 230
AQ = 0
AK = 64
AV = 96
AO = 128
NUM_AGPR = 144

S_K, S_V, S_Q, S_O = 8, 12, 16, 20
sW = 24
sKOFF, sVOFF = 25, 26
sM = 27
sD, sDELTA = 28, 29
sU = 30
sC = 31
sT = 32
sFAIL = 33
sPRIV = 34
sMASK3 = 35
sJ = 36
sTMP = 40
sPAIR = 48
sROW = 49
sKARG = 50
sQB = 52
sST = 60

KRING, VRING, PRIV = 0, 49152, 98304
HS = 128
QHEAD = 126976
KHEAD = 131072
SCALE = 0.08838834764831845 * 1.4426950408889634


def f32bits(x):
    import struct
    return struct.unpack('<I', struct.pack('<f', x))[0]


def Oreg(a, blk, r=0):
    return O_BASE + 64 * a + 16 * blk + r


def Sreg(st, a, r=0):
    return S_BASE + 32 * st + 16 * a + r


def Qreg(a, s):
    return AQ + 32 * a + 4 * s


class Cfg:
    kvpol = 'nt'
    qpol = 'nt'
    opol = 'nt'
    stamp = False
    headmap = 'strided'
    o_sched = None
    q_sched = None
    slow = True


def elem(e):
    grp, i = divmod(e, 8)
    return (grp & 1, (grp >> 1) * 8 + i)


def softmax_ops(st):
    ops = []
    for e in range(32):
        a, r = elem(e)
        x = Sreg(st, a, r)
        ops.append((17 + e, 0, valu(f"v_fma_f32 v{x}, v{x}, s{sC}, -v{MC + a}", [f"v{x}", f"v{MC + a}"], [f"v{x}"]), None))
        ops.append((18 + e, 1, valu(f"v_exp_f32 v{x}, v{x}", [f"v{x}"], [f"v{x}"], 'trans'), None))
        ops.append((19 + e, 2, valu(f"v_add_f32 v{LS + a}, v{LS + a}, v{x}", [f"v{x}", f"v{LS + a}"], [f"v{LS + a}"]), None))
    for j in range(16):
        a, r = elem(2 * j)
        x = Sreg(st, a, r)
        kk, tt = divmod(r, 8)
        d = Sreg(st, a, 8 * kk + tt // 2)
        latest = 46 + a + 8 * kk
        ops.append((20 + 2 * j, 3, valu(f"v_cvt_pk_bf16_f32 v{d}, v{x}, v{x + 1}", [f"v{x}", f"v{x + 1}"], [f"v{d}"]), latest))
    return ops


class Gap:
    def __init__(self, m):
        self.m = m
        self.pre = []
        self.ds = []
        self.vm = []
        self.valu = []
        self.post = []

    def cost(self):
        c = 4 * len(self.ds) + 8 * len(self.vm)
        for v in self.valu:
            c += COST[v.kind]
        c += 4 * max(0, len(self.pre) - 1)
        return c

    def flat(self):
        out = [self.m] + self.pre + self.ds
        for v in self.vm:
            out.append(v)
        out += self.valu + self.post
        return out


def kread(s, par, tagp):
    return ds_read('b128', 'a', AK + 4 * s, KA + s, 8192 * par, tag=('K', tagp, s))


def vread(f, u, par, tagp):
    kk, blk = divmod(f, 4)
    return ds_read('b64_tr_b16', 'a', AV + 4 * f + 2 * u, VA + blk, 8192 * par + 4096 * kk + 2048 * u, tag=('V', tagp, f, u))


def max_ops(st, a):
    t0, t1 = TMP + 2 * a, TMP + 2 * a + 1
    s = lambda r: f"v{Sreg(st, a, r)}"
    ops = [valu(f"v_max3_f32 v{t0}, {s(0)}, {s(1)}, {s(2)}", [s(0), s(1), s(2)], [f"v{t0}"])]
    for i in range(6):
        ops.append(valu(f"v_max3_f32 v{t0}, v{t0}, {s(3 + 2 * i)}, {s(4 + 2 * i)}", [f"v{t0}", s(3 + 2 * i), s(4 + 2 * i)], [f"v{t0}"]))
    ops.append(valu(f"v_max_f32 v{t0}, v{t0}, {s(15)}", [f"v{t0}", s(15)], [f"v{t0}"]))
    ops.append(valu(f"v_mov_b32 v{t1}, v{t0}", [f"v{t0}"], [f"v{t1}"]))
    tail = [valu(f"v_permlane32_swap_b32 v{t0}, v{t1}", [f"v{t0}", f"v{t1}"], [f"v{t0}", f"v{t1}"], 'perm'),
            valu(f"v_max_f32 v{t0}, v{t0}, v{t1}", [f"v{t0}", f"v{t1}"], [f"v{t0}"]),
            valu(f"v_mul_f32 v{MC + a}, s{sC}, v{t0}", [f"v{t0}"], [f"v{MC + a}"])]
    return ops, tail


def lsum_ops(a):
    t = TMP + 4 + a
    l = LS + a
    rl = RL + 2 * a
    head = [valu(f"v_mov_b32 v{t}, v{l}", [f"v{l}"], [f"v{t}"])]
    tail = [valu(f"v_permlane32_swap_b32 v{t}, v{l}", [f"v{t}", f"v{l}"], [f"v{t}", f"v{l}"], 'perm'),
            valu(f"v_add_f32 v{LT + a}, v{t}, v{l}", [f"v{t}", f"v{l}"], [f"v{LT + a}"]),
            valu(f"v_rcp_f32 v{rl}, v{LT + a}", [f"v{LT + a}"], [f"v{rl}"], 'trans'),
            valu(f"v_mov_b32 v{l}, 0", [], [f"v{l}"])]
    return head, tail


def build_phases(cfg):
    phases = []
    for g in range(16):
        st_w = (g + 1) & 1
        st_r = g & 1
        gaps = []
        for k in range(32):
            if k < 16:
                s, a = divmod(k, 2)
                m = mfma('v', Sreg(st_w, a), 'a', AK + 4 * s, 'a', Qreg(a, s), czero=(s == 0))
            else:
                f, a = divmod(k - 16, 2)
                kk, blk = divmod(f, 4)
                m = mfma('v', Oreg(a, blk), 'a', AV + 4 * f, 'v', Sreg(st_r, a, 8 * kk), czero=(g == 0 and kk == 0))
            gaps.append(Gap(m))
        phases.append(gaps)

    def G(g, t):
        gg, k = (g + t // 32) % 16, t % 32
        return phases[gg][k]

    for g in range(16):
        par = g & 1
        for s in range(8):
            t = -5 + s if s < 5 else s - 5
            gg = (g - 1) % 16 if t < 0 else g
            phases[gg][t % 32].ds.append(kread(s, par, g))
        for f in range(8):
            for u in range(2):
                phases[g][7 + 2 * f + u].ds.append(vread(f, u, par, g))
        for s in range(8):
            k = 2 * s - 1
            gg = (g - 1) % 16 if k < 0 else g
            phases[gg][k % 32].pre.append(wait(l=[('K', g, s)]))
        for f in range(8):
            phases[g][15 + 2 * f].pre.append(wait(l=[('V', g, f, 0), ('V', g, f, 1)]))

    for g in range(16):
        phases[g][26].post += [wait(v=[('kv', (g + 1) % 16)], l0=True), barrier()]

    for g in range(16):
        tag = ('kv', (g + 5) % 16)
        ph = phases[g]
        ph[2].pre.append(salu(f"s_mov_b32 m0, s{sM}", [], ['m0']))
        ph[3].vm.append(dma(VOFFK, S_K, f"s{sKOFF}", 0, cfg.kvpol, tag))
        ph[4].vm.append(dma(VOFFK + 1, S_K, f"s{sKOFF}", 1024, cfg.kvpol, tag))
        ph[4].post.append(salu(f"s_add_u32 m0, s{sM}, {VRING}", [], ['m0']))
        ph[5].vm.append(dma(VOFFV, S_V, f"s{sVOFF}", 0, cfg.kvpol, tag))
        ph[6].vm.append(dma(VOFFV, S_V, f"s{sVOFF}", 1024, cfg.kvpol, tag))
        kinc = 8192 if (g + 6) % 16 != 15 else HS * KHEAD - 15 * 8192
        vinc = 8192 if (g + 5) % 16 != 15 else HS * KHEAD - 15 * 8192
        ph[8].pre.append(salu(f"s_add_u32 s{sKOFF}, s{sKOFF}, {kinc}"))
        ph[10].pre.append(salu(f"s_add_u32 s{sVOFF}, s{sVOFF}, {vinc}"))
        ph[12].pre.append(salu(f"s_add_u32 s{sM}, s{sM}, 8192"))
        ph[14].pre.append(salu(f"s_cmp_ge_u32 s{sM}, {6 * 8192}"))
        ph[14].pre.append(salu(f"s_cselect_b32 s{sTMP}, {6 * 8192}, 0"))
        ph[16].pre.append(salu(f"s_sub_u32 s{sM}, s{sM}, s{sTMP}"))
        if g == 10:
            ph[0].pre.append(salu(f"s_cmp_eq_u32 s{sU}, 3"))
            ph[0].pre.append(salu(f"s_cselect_b32 s{S_K + 2}, 0, s{S_K + 2}"))
        if g == 11:
            ph[0].pre.append(salu(f"s_cmp_eq_u32 s{sU}, 3"))
            ph[0].pre.append(salu(f"s_cselect_b32 s{S_V + 2}, 0, s{S_V + 2}"))

    for g in range(1, 16, 2):
        ph = phases[g]
        ph[0].pre.append(salu(f"s_add_u32 s{sTMP + 1}, s{sD}, 16384"))
        ph[2].post.append(salu(f"s_cmp_eq_u32 s{sTMP + 1}, 49152"))
        ph[2].post.append(salu(f"s_cselect_b32 s{sTMP + 1}, 0, s{sTMP + 1}"))
        ph[2].post.append(salu(f"s_sub_u32 s{sDELTA}, s{sTMP + 1}, s{sD}"))
        ph[2].post.append(salu(f"s_mov_b32 s{sD}, s{sTMP + 1}"))
        for s in range(8):
            ph[7 + 2 * s].valu.append(valu(f"v_add_u32 v{KA + s}, s{sDELTA}, v{KA + s}", [f"v{KA + s}"], [f"v{KA + s}"]))
        for b in range(4):
            tgt = ph[27 + 2 * b] if b < 2 else (ph[31] if b == 2 else phases[(g + 1) % 16][1])
            tgt.valu.append(valu(f"v_add_u32 v{VA + b}, s{sDELTA}, v{VA + b}", [f"v{VA + b}"], [f"v{VA + b}"]))

    o_sched = cfg.o_sched or [p // 2 for p in range(16)]
    q_sched = cfg.q_sched or [3 + p // 2 for p in range(16)]
    cnt = {}
    for p in range(16):
        g = o_sched[p]
        n = cnt.get(g, 0)
        cnt[g] = n + 1
        tmp = AO + 4 * (p % 4)
        rd_gap, st_gap = 23 + n, 3 + 2 * n
        phases[g][rd_gap].ds.append(ds_read('b128', 'a', tmp, ORA, 1024 * p, tag=('OR', p)))
        j, i = divmod(p, 4)
        tg = phases[g + 1][0 + n]
        pre = [wait(l=[('OR', p)])]
        if p == 12:
            pre.append(salu(f"s_and_b32 s{S_O + 2}, s{S_O + 2}, s{sMASK3}"))
        tg.pre += pre
        tg.vm.append(bstore('a', tmp, VOFFP + i, S_O, f"s{sJ + j - 1}" if j else "0", 1024 * i, cfg.opol, ('o', p)))
    cnt = {}
    for p in range(16):
        g = q_sched[p]
        assert g > o_sched[p], "Q piece would overwrite O data not yet read back"
        n = cnt.get(g, 0)
        cnt[g] = n + 1
        j, i = divmod(p, 4)
        tg = phases[g][23 + n]
        pre = []
        if p == 12:
            pre.append(salu(f"s_and_b32 s{S_Q + 2}, s{S_Q + 2}, s{sMASK3}"))
        if n == 0 or (p % 4 == 0):
            if j:
                pre.append(salu(f"s_add_u32 m0, s{sPRIV}, {4096 * j}", [], ['m0']))
            else:
                pre.append(salu(f"s_mov_b32 m0, s{sPRIV}", [], ['m0']))
            phases[g][22 + n].post += pre
        else:
            phases[g][22 + n].post += pre
        tg.vm.append(dma(VOFFP + i, S_Q, f"s{sJ + j - 1}" if j else "0", 1024 * i, cfg.qpol, ('q', p)))

    phases[14][0].pre.append(wait(v=[('q', 15)]))
    for s in range(8):
        for a in range(2):
            k = 2 * s + a
            phases[14][k + 8].ds.append(ds_read('b128', 'a', Qreg(a, s), QA + s, 8192 * a, tag=('Q', a, s)))

    catchup = []
    for g in range(16):
        st = (g + 1) & 1
        ops = softmax_ops(st)
        if g < 15:
            fixed = [o for o in ops if o[3] is None]
            mov = [o for o in ops if o[3] is not None]
            for t, order, ins, _ in fixed:
                G(g, t).valu.append((order, ins))
            phases_mov = mov
            for t, order, ins, latest in phases_mov:
                G(g, t).valu.append((order, ins))
        else:
            DELAY = 8
            for t, order, ins, latest in ops:
                if t >= 32:
                    G(g, t).valu.append((order, ins))
                elif t + DELAY < 32:
                    G(g, t + DELAY).valu.append((order, ins))
                else:
                    catchup.append((t, order, ins))
            ph = phases[15]
            for a in range(2):
                head, tail = max_ops(st, a)
                base = 17 + a
                for i, ins in enumerate(head):
                    ph[base + i // 3].valu.append((4 + a, ins))
                ph[21 + a].valu.append((4 + a, tail[0]))
                ph[22 + a].valu.append((4 + a, tail[1]))
                ph[22 + a].valu.append((4 + a, tail[2]))
            for a in range(2):
                head, tail = lsum_ops(a)
                ph[19 + a].valu.append((6 + a, head[0]))
                ph[20 + a].valu.append((7, tail[0]))
                ph[21 + a].valu.append((7, tail[1]))
                ph[22 + a].valu.append((7, tail[2]))
                ph[22 + a].valu.append((8, tail[3]))
    for ph in phases:
        for gp in ph:
            keyed = [(v if isinstance(v, tuple) else (5, v)) for v in gp.valu]
            keyed.sort(key=lambda x: x[0])
            gp.valu = [v[1] for v in keyed]
    catchup.sort(key=lambda x: (x[0], x[1]))
    return phases, [c[2] for c in catchup]


def epilogue_ops():
    out = []
    for blk in range(4):
        for a in range(2):
            writes = []
            for ih in range(2):
                b = Oreg(a, blk, 8 * ih)
                rl = RL + 2 * a
                for i in range(4):
                    x = b + 2 * i
                    out.append(valu(f"v_pk_mul_f32 v[{x}:{x + 1}], v[{x}:{x + 1}], v[{rl}:{rl + 1}] op_sel_hi:[1,0]",
                                    [f"v{x}", f"v{x + 1}", f"v{rl}"], [f"v{x}", f"v{x + 1}"], 'pk'))
                for i in range(4):
                    x = b + 2 * i
                    out.append(valu(f"v_cvt_pk_bf16_f32 v{b + i}, v{x}, v{x + 1}", [f"v{x}", f"v{x + 1}"], [f"v{b + i}"]))
                writes.append(ds_write('b128', QA + 2 * blk + ih, 'v', b, 8192 * a, tag=('OW', a, blk, ih)))
            out += writes
    return out


def setup_code(cfg):
    L = []
    A = L.append
    A(raw(f"s_cmp_ge_u32 s2, 256", 'salu'))
    A(raw(f"s_cbranch_scc1 L_end", 'branch'))
    A(raw(f"s_load_dwordx4 s[{sQB}:{sQB + 3}], s[0:1], 0"))
    A(raw(f"s_load_dwordx4 s[{sQB + 4}:{sQB + 7}], s[0:1], 16"))
    if cfg.stamp:
        A(raw(f"s_load_dwordx2 s[{sST + 8}:{sST + 9}], s[0:1], 40"))
        A(raw(f"s_memrealtime s[{sST}:{sST + 1}]"))
        A(raw(f"s_memtime s[{sST + 2}:{sST + 3}]"))
    t = TMP
    V = lambda txt, rd, wr: A(valu(txt, rd, wr))
    V(f"v_lshrrev_b32 v{t}, 6, v0", ['v0'], [f"v{t}"])
    V(f"v_and_b32 v{t + 1}, 63, v0", ['v0'], [f"v{t + 1}"])
    A(nop(0))
    A(valu(f"v_readfirstlane_b32 s{sW}, v{t}", [f"v{t}"], [f"s{sW}"]))
    lane = t + 1
    V(f"v_and_b32 v{t + 2}, 31, v{lane}", [], [f"v{t + 2}"])
    V(f"v_lshrrev_b32 v{t + 3}, 5, v{lane}", [], [f"v{t + 3}"])
    V(f"v_and_b32 v{t + 4}, 15, v{t + 2}", [], [f"v{t + 4}"])
    V(f"v_xor_b32 v{t + 4}, v{t + 3}, v{t + 4}", [], [f"v{t + 4}"])
    V(f"v_lshlrev_b32 v{t + 4}, 4, v{t + 4}", [], [f"v{t + 4}"])
    V(f"v_lshlrev_b32 v{t + 2}, 8, v{t + 2}", [], [f"v{t + 2}"])
    V(f"v_add_u32 v{t + 4}, v{t + 2}, v{t + 4}", [], [f"v{t + 4}"])
    A(salu(f"s_and_b32 s{sTMP}, s2, 7"))
    A(salu(f"s_lshr_b32 s{sTMP + 1}, s2, 3"))
    A(salu(f"s_and_b32 s{sTMP + 2}, s{sTMP + 1}, 1"))
    A(salu(f"s_lshr_b32 s{sTMP + 1}, s{sTMP + 1}, 1"))
    A(salu(f"s_lshl_b32 s{sTMP + 1}, s{sTMP + 1}, 3"))
    A(salu(f"s_add_u32 s{sPAIR}, s{sTMP}, s{sTMP + 1}"))
    A(salu(f"s_lshl_b32 s{sTMP + 3}, s{sTMP + 2}, 8"))
    A(salu(f"s_lshl_b32 s{sTMP + 4}, s{sW}, 6", [f"s{sW}"]))
    A(salu(f"s_add_u32 s{sROW}, s{sTMP + 3}, s{sTMP + 4}"))
    A(salu(f"s_cmp_eq_u32 s{sROW}, 448"))
    A(salu(f"s_cselect_b32 s{sMASK3}, 0, -1"))
    A(salu(f"s_lshl_b32 s{sTMP + 5}, s{sW}, 14"))
    A(salu(f"s_add_u32 s{sPRIV}, s{sTMP + 5}, {PRIV}"))
    A(salu(f"s_mov_b32 s{sJ}, 4096"))
    A(salu(f"s_mov_b32 s{sJ + 1}, 8192"))
    A(salu(f"s_mov_b32 s{sJ + 2}, 12288"))
    A(salu(f"s_mov_b32 s{sC}, 0x{f32bits(SCALE):08x}"))
    A(salu(f"s_mov_b32 s{sT}, 0x{f32bits(2.0 ** 40):08x}"))
    A(salu(f"s_mov_b32 s{sFAIL}, 0"))
    A(salu(f"s_mov_b32 s{sU}, 0"))
    for s in range(8):
        V(f"v_xor_b32 v{KA + s}, {32 * s}, v{t + 4}", [], [f"v{KA + s}"])
    for s in range(8):
        V(f"v_add_u32 v{QA + s}, s{sPRIV}, v{KA + s}", [], [f"v{QA + s}"])
    for s in range(8):
        V(f"v_add_u32 v{KA + s}, {KRING + 32768}, v{KA + s}", [], [f"v{KA + s}"])
    V(f"v_bfe_u32 v{t + 5}, v{lane}, 2, 2", [], [f"v{t + 5}"])
    V(f"v_lshl_add_u32 v{t + 6}, v{t + 3}, 2, v{t + 5}", [], [f"v{t + 6}"])
    V(f"v_lshlrev_b32 v{t + 6}, 8, v{t + 6}", [], [f"v{t + 6}"])
    V(f"v_bfe_u32 v{t + 7}, v{lane}, 4, 1", [], [f"v{t + 7}"])
    V(f"v_lshl_add_u32 v{t + 6}, v{t + 7}, 5, v{t + 6}", [], [f"v{t + 6}"])
    V(f"v_and_b32 v{t + 7}, 1, v{lane}", [], [f"v{t + 7}"])
    V(f"v_lshl_add_u32 v{t + 6}, v{t + 7}, 4, v{t + 6}", [], [f"v{t + 6}"])
    V(f"v_bfe_u32 v{t + 7}, v{lane}, 1, 1", [], [f"v{t + 7}"])
    V(f"v_lshl_add_u32 v{t + 6}, v{t + 7}, 3, v{t + 6}", [], [f"v{t + 6}"])
    V(f"v_add_u32 v{t + 6}, {VRING + 32768}, v{t + 6}", [], [f"v{t + 6}"])
    for b in range(4):
        V(f"v_xor_b32 v{t + 7}, {b}, v{t + 5}", [], [f"v{t + 7}"])
        V(f"v_lshl_add_u32 v{VA + b}, v{t + 7}, 6, v{t + 6}", [], [f"v{VA + b}"])
    V(f"v_lshrrev_b32 v{t + 5}, 4, v{lane}", [], [f"v{t + 5}"])
    V(f"v_and_b32 v{t + 6}, 15, v{lane}", [], [f"v{t + 6}"])
    V(f"v_lshlrev_b32 v{t + 7}, 8, v{t + 5}", [], [f"v{t + 7}"])
    for i in range(4):
        V(f"v_add_u32 v{t + 8}, {4 * i}, v{t + 5}", [], [f"v{t + 8}"])
        V(f"v_xor_b32 v{t + 8}, v{t + 8}, v{t + 6}", [], [f"v{t + 8}"])
        V(f"v_lshl_add_u32 v{VOFFP + i}, v{t + 8}, 4, v{t + 7}", [], [f"v{VOFFP + i}"])
    A(salu(f"s_and_b32 s{sTMP}, s{sW}, 1"))
    A(salu(f"s_lshl_b32 s{sTMP}, s{sTMP}, 3"))
    for i in range(2):
        V(f"v_add_u32 v{t + 8}, s{sTMP}, v{t + 5}", [], [f"v{t + 8}"])
        if i:
            V(f"v_add_u32 v{t + 8}, 4, v{t + 8}", [], [f"v{t + 8}"])
        V(f"v_xor_b32 v{t + 8}, v{t + 8}, v{t + 6}", [], [f"v{t + 8}"])
        V(f"v_lshl_add_u32 v{VOFFK + i}, v{t + 8}, 4, v{t + 7}", [], [f"v{VOFFK + i}"])
    V(f"v_lshlrev_b32 v{t + 8}, 2, v{t + 5}", [], [f"v{t + 8}"])
    V(f"v_xor_b32 v{t + 8}, v{t + 8}, v{t + 6}", [], [f"v{t + 8}"])
    V(f"v_lshl_add_u32 v{VOFFV}, v{t + 8}, 4, v{t + 7}", [], [f"v{VOFFV}"])
    V(f"v_lshlrev_b32 v{ORA}, 4, v{lane}", [], [f"v{ORA}"])
    V(f"v_add_u32 v{ORA}, s{sPRIV}, v{ORA}", [], [f"v{ORA}"])
    V(f"v_mov_b32 v{LS}, 0", [], [f"v{LS}"])
    V(f"v_mov_b32 v{LS + 1}, 0", [], [f"v{LS + 1}"])
    A(raw("s_waitcnt lgkmcnt(0)"))
    q, k, v, o = sQB, sQB + 2, sQB + 4, sQB + 6
    for srd, p in ((S_K, k), (S_V, v)):
        A(salu(f"s_mov_b32 s{srd}, s{p}"))
        A(salu(f"s_mov_b32 s{srd + 1}, s{p + 1}"))
        A(salu(f"s_mov_b32 s{srd + 2}, {512 * KHEAD}"))
        A(salu(f"s_mov_b32 s{srd + 3}, 0x20000"))
    if cfg.headmap == 'strided':
        A(salu(f"s_mov_b32 s{sTMP + 6}, s{sPAIR}"))
    else:
        raise NotImplementedError
    A(salu(f"s_mul_i32 s{sTMP}, s{sTMP + 6}, {QHEAD}"))
    A(salu(f"s_lshl_b32 s{sTMP + 1}, s{sROW}, 8"))
    A(salu(f"s_add_u32 s{sTMP}, s{sTMP}, s{sTMP + 1}"))
    A(salu(f"s_add_u32 s{S_Q}, s{q}, s{sTMP}"))
    A(salu(f"s_addc_u32 s{S_Q + 1}, s{q + 1}, 0"))
    A(salu(f"s_mov_b32 s{S_Q + 2}, 16384"))
    A(salu(f"s_mov_b32 s{S_Q + 3}, 0x20000"))
    A(salu(f"s_add_u32 s{S_O}, s{o}, s{sTMP}"))
    A(salu(f"s_addc_u32 s{S_O + 1}, s{o + 1}, 0"))
    A(salu(f"s_mov_b32 s{S_O + 2}, 0"))
    A(salu(f"s_mov_b32 s{S_O + 3}, 0x20000"))
    A(salu(f"s_lshl_b32 s{sKOFF}, s{sTMP + 6}, 17"))
    A(salu(f"s_lshl_b32 s{sTMP + 1}, s{sW}, 11"))
    A(salu(f"s_add_u32 s{sKOFF}, s{sKOFF}, s{sTMP + 1}"))
    A(salu(f"s_mov_b32 s{sVOFF}, s{sKOFF}"))
    A(salu(f"s_mov_b32 s{sM}, s{sTMP + 1}"))
    A(salu(f"s_mov_b32 s{sD}, 32768"))
    return L


def prologue_code(cfg, catch_all):
    L = []
    A = L.append
    A(salu(f"s_add_u32 m0, s{sM}, {KRING + 5 * 8192}", [], ['m0']))
    A(nop(0))
    A(dma(VOFFK, S_K, f"s{sKOFF}", 0, cfg.kvpol, 'k0'))
    A(dma(VOFFK + 1, S_K, f"s{sKOFF}", 1024, cfg.kvpol, 'k0'))
    A(salu(f"s_add_u32 s{sKOFF}, s{sKOFF}, 8192"))
    for j in range(4):
        if j == 3:
            A(salu(f"s_and_b32 s{S_Q + 2}, s{S_Q + 2}, s{sMASK3}"))
        A(salu(f"s_add_u32 m0, s{sPRIV}, {4096 * j}", [], ['m0']))
        A(nop(0))
        for i in range(4):
            A(dma(VOFFP + i, S_Q, f"s{sJ + j - 1}" if j else "0", 1024 * i, cfg.qpol, 'q0'))
    for n in range(5):
        A(salu(f"s_add_u32 m0, s{sM}, {KRING + n * 8192}", [], ['m0']))
        A(nop(0))
        A(dma(VOFFK, S_K, f"s{sKOFF}", 0, cfg.kvpol, ('kv', n)))
        A(dma(VOFFK + 1, S_K, f"s{sKOFF}", 1024, cfg.kvpol, ('kv', n)))
        A(salu(f"s_add_u32 m0, s{sM}, {VRING + n * 8192}", [], ['m0']))
        A(salu(f"s_add_u32 s{sKOFF}, s{sKOFF}, 8192"))
        A(dma(VOFFV, S_V, f"s{sVOFF}", 0, cfg.kvpol, ('kv', n)))
        A(dma(VOFFV, S_V, f"s{sVOFF}", 1024, cfg.kvpol, ('kv', n)))
        A(salu(f"s_add_u32 s{sVOFF}, s{sVOFF}, 8192"))
    A(salu(f"s_add_u32 s{sM}, s{sM}, {5 * 8192}"))
    A(salu(f"s_add_u32 s{S_Q}, s{S_Q}, {HS * QHEAD}"))
    A(salu(f"s_addc_u32 s{S_Q + 1}, s{S_Q + 1}, 0"))
    A(salu(f"s_mov_b32 s{S_Q + 2}, 16384"))
    A(wait(v=['q0', 'k0']))
    A(barrier())
    for s in range(8):
        for a in range(2):
            A(ds_read('b128', 'a', Qreg(a, s), QA + s, 8192 * a, tag=('Q', a, s)))
    for s in range(8):
        A(ds_read('b128', 'a', AK + 4 * s, KA + s, 8192, tag=('K0', s)))
    A(wait(l0=True))
    for s in range(8):
        for a in range(2):
            A(mfma('v', Sreg(0, a), 'a', AK + 4 * s, 'a', Qreg(a, s), czero=(s == 0)))
    A(salu(f"s_mov_b32 s{sDELTA}, {-32768 & 0xffffffff}"))
    A(salu(f"s_mov_b32 s{sD}, 0"))
    for s in range(8):
        A(valu(f"v_add_u32 v{KA + s}, s{sDELTA}, v{KA + s}", [f"v{KA + s}"], [f"v{KA + s}"]))
    for b in range(3):
        A(valu(f"v_add_u32 v{VA + b}, s{sDELTA}, v{VA + b}", [f"v{VA + b}"], [f"v{VA + b}"]))
    A(wait(v=[('kv', 0)]))
    A(barrier())
    for s in range(5):
        A(kread(s, 0, 0))
    A(nop(3))
    hs = [max_ops(0, a) for a in range(2)]
    for i in range(9):
        for a in range(2):
            A(hs[a][0][i])
    A(nop(0))
    for i in range(3):
        for a in range(2):
            A(hs[a][1][i])
    L += catch_all
    A(wait(l=[('K', 0, 0)]))
    return L


def slow_path(cfg):
    L = []
    A = L.append
    V = lambda txt, rd=(), wr=(): A(valu(txt, rd, wr))
    t = TMP
    q, k, v, o = sQB, sQB + 2, sQB + 4, sQB + 6
    sH, sA, sG, sB = sTMP, sTMP + 1, sTMP + 2, sTMP + 3
    A(label("L_slow"))
    A(raw("s_barrier", 'bar'))
    A(salu(f"s_cmp_eq_u32 s{sFAIL}, 0"))
    A(raw("s_cbranch_scc1 L_done", 'branch'))
    V(f"v_mbcnt_lo_u32_b32 v{t}, -1, 0", [], [f"v{t}"])
    V(f"v_mbcnt_hi_u32_b32 v{t}, -1, v{t}", [], [f"v{t}"])
    V(f"v_and_b32 v{t + 1}, 31, v{t}", [], [f"v{t + 1}"])
    V(f"v_lshrrev_b32 v{t + 2}, 5, v{t}", [], [f"v{t + 2}"])
    V(f"v_lshlrev_b32 v{t + 1}, 8, v{t + 1}", [], [f"v{t + 1}"])
    V(f"v_lshl_add_u32 v{t + 1}, v{t + 2}, 4, v{t + 1}", [], [f"v{t + 1}"])
    ROWOFF = t + 1
    V(f"v_add_u32 v{VA + 3}, s{sDELTA}, v{VA + 3}", [], [f"v{VA + 3}"])
    A(salu(f"s_add_u32 s{sB}, s{sD}, {VRING}"))
    A(salu(f"s_sub_u32 s{sB}, s{sPRIV}, s{sB}"))
    for b in range(4):
        V(f"v_add_u32 v{VA + b}, s{sB}, v{VA + b}", [], [f"v{VA + b}"])
    A(salu(f"s_mov_b32 s{S_K + 2}, {512 * KHEAD}"))
    A(salu(f"s_mov_b32 s{S_V + 2}, {512 * KHEAD}"))
    A(label("L_slow_unit"))
    A(salu(f"s_ff1_i32_b32 s{sH}, s{sFAIL}"))
    A(salu(f"s_bitset0_b32 s{sFAIL}, s{sH}"))
    A(salu(f"s_mul_i32 s{sH}, s{sH}, {HS}"))
    A(salu(f"s_add_u32 s{sH}, s{sH}, s{sPAIR}"))
    A(salu(f"s_mov_b32 s{sA}, 0"))
    A(label("L_slow_blk"))
    A(salu(f"s_mul_i32 s{sB}, s{sH}, {QHEAD}"))
    A(salu(f"s_add_u32 s{S_Q}, s{q}, s{sB}"))
    A(salu(f"s_addc_u32 s{S_Q + 1}, s{q + 1}, 0"))
    A(salu(f"s_mov_b32 s{S_Q + 2}, {QHEAD}"))
    A(salu(f"s_add_u32 s{S_O}, s{o}, s{sB}"))
    A(salu(f"s_addc_u32 s{S_O + 1}, s{o + 1}, 0"))
    A(salu(f"s_mov_b32 s{S_O + 2}, {QHEAD}"))
    A(salu(f"s_lshl_b32 s{sB}, s{sA}, 5"))
    A(salu(f"s_add_u32 s{sB}, s{sB}, s{sROW}"))
    A(salu(f"s_lshl_b32 s{sB}, s{sB}, 8"))
    QOFF = t + 2
    V(f"v_add_u32 v{QOFF}, s{sB}, v{ROWOFF}", [], [f"v{QOFF}"])
    for s in range(8):
        A(bload('a', AQ + 4 * s, QOFF, S_Q, "0", 32 * s))
    M = t + 3
    V(f"v_mov_b32 v{M}, 0xff800000", [], [f"v{M}"])
    KOFF = t + 4

    def scores(lbl):
        A(salu(f"s_lshl_b32 s{sB}, s{sH}, 17"))
        A(salu(f"s_lshl_b32 s{sTMP + 4}, s{sG}, 13"))
        A(salu(f"s_add_u32 s{sB}, s{sB}, s{sTMP + 4}"))
        V(f"v_add_u32 v{KOFF}, s{sB}, v{ROWOFF}", [], [f"v{KOFF}"])
        for s in range(8):
            A(bload('a', AK + 4 * s, KOFF, S_K, "0", 32 * s))
        A(raw("s_waitcnt vmcnt(0)"))
        for s in range(8):
            A(mfma('v', Sreg(0, 0), 'a', AK + 4 * s, 'a', AQ + 4 * s, czero=(s == 0)))
        A(nop(15))

    A(salu(f"s_mov_b32 s{sG}, 0"))
    A(label("L_slow_p1"))
    scores("p1")
    for r in range(16):
        V(f"v_max_f32 v{M}, v{M}, v{Sreg(0, 0, r)}", [f"v{M}", f"v{Sreg(0, 0, r)}"], [f"v{M}"])
    A(salu(f"s_add_u32 s{sG}, s{sG}, 1"))
    A(salu(f"s_cmp_lt_u32 s{sG}, 16"))
    A(raw("s_cbranch_scc1 L_slow_p1", 'branch'))
    V(f"v_mov_b32 v{t + 5}, v{M}", [f"v{M}"], [f"v{t + 5}"])
    A(nop(1))
    A(valu(f"v_permlane32_swap_b32 v{M}, v{t + 5}", [f"v{M}", f"v{t + 5}"], [f"v{M}", f"v{t + 5}"], 'perm'))
    V(f"v_max_f32 v{M}, v{M}, v{t + 5}", [], [f"v{M}"])
    V(f"v_mul_f32 v{MC}, s{sC}, v{M}", [], [f"v{MC}"])
    V(f"v_mov_b32 v{LS}, 0", [], [f"v{LS}"])
    for r in range(64):
        V(f"v_mov_b32 v{Oreg(0, 0) + r}, 0", [], [f"v{Oreg(0, 0) + r}"])
    A(salu(f"s_mov_b32 s{sG}, 0"))
    A(label("L_slow_p2"))
    A(salu(f"s_lshl_b32 s{sB}, s{sH}, 17"))
    A(salu(f"s_lshl_b32 s{sTMP + 4}, s{sG}, 13"))
    A(salu(f"s_add_u32 s{sTMP + 5}, s{sB}, s{sTMP + 4}"))
    for half in range(2):
        A(salu(f"s_add_u32 m0, s{sPRIV}, {4096 * half}", [], ['m0']))
        if half:
            A(salu(f"s_add_u32 s{sTMP + 5}, s{sTMP + 5}, 4096"))
        else:
            A(nop(0))
        for i in range(4):
            A(dma(VOFFV, S_V, f"s{sTMP + 5}", 1024 * i, '', None))
    scores("p2")
    for r in range(16):
        x = Sreg(0, 0, r)
        V(f"v_fma_f32 v{x}, v{x}, s{sC}, -v{MC}", [f"v{x}"], [f"v{x}"])
    for r in range(16):
        x = Sreg(0, 0, r)
        A(valu(f"v_exp_f32 v{x}, v{x}", [f"v{x}"], [f"v{x}"], 'trans'))
    A(nop(0))
    for r in range(16):
        x = Sreg(0, 0, r)
        V(f"v_add_f32 v{LS}, v{LS}, v{x}", [f"v{x}"], [f"v{LS}"])
    for kk in range(2):
        for i in range(4):
            x = Sreg(0, 0, 8 * kk + 2 * i)
            V(f"v_cvt_pk_bf16_f32 v{Sreg(0, 0, 8 * kk + i)}, v{x}, v{x + 1}", [f"v{x}", f"v{x + 1}"], [f"v{Sreg(0, 0, 8 * kk + i)}"])
    for f in range(8):
        for u in range(2):
            A(vread(f, u, 0, 'slow'))
    A(raw("s_waitcnt lgkmcnt(0)"))
    for f in range(8):
        kk, blk = divmod(f, 4)
        A(mfma('v', Oreg(0, blk), 'a', AV + 4 * f, 'v', Sreg(0, 0, 8 * kk)))
    A(nop(15))
    A(salu(f"s_add_u32 s{sG}, s{sG}, 1"))
    A(salu(f"s_cmp_lt_u32 s{sG}, 16"))
    A(raw("s_cbranch_scc1 L_slow_p2", 'branch'))
    V(f"v_mov_b32 v{t + 5}, v{LS}", [f"v{LS}"], [f"v{t + 5}"])
    A(nop(1))
    A(valu(f"v_permlane32_swap_b32 v{LS}, v{t + 5}", [f"v{LS}", f"v{t + 5}"], [f"v{LS}", f"v{t + 5}"], 'perm'))
    V(f"v_add_f32 v{LS}, v{LS}, v{t + 5}", [], [f"v{LS}"])
    A(valu(f"v_rcp_f32 v{LS}, v{LS}", [f"v{LS}"], [f"v{LS}"], 'trans'))
    A(nop(0))
    for r in range(64):
        V(f"v_mul_f32 v{r}, v{LS}, v{r}", [f"v{r}"], [f"v{r}"])
    for blk in range(4):
        for ih in range(2):
            b = Oreg(0, blk, 8 * ih)
            for i in range(4):
                V(f"v_cvt_pk_bf16_f32 v{b + i}, v{b + 2 * i}, v{b + 2 * i + 1}", [f"v{b + 2 * i}", f"v{b + 2 * i + 1}"], [f"v{b + i}"])
            A(bstore('v', b, QOFF, S_O, "0", 32 * (2 * blk + ih), '', None))
    A(raw("s_waitcnt vmcnt(0)"))
    A(salu(f"s_add_u32 s{sA}, s{sA}, 1"))
    A(salu(f"s_cmp_lt_u32 s{sA}, 2"))
    A(raw("s_cbranch_scc1 L_slow_blk", 'branch'))
    A(salu(f"s_cmp_lg_u32 s{sFAIL}, 0"))
    A(raw("s_cbranch_scc1 L_slow_unit", 'branch'))
    return L


def generate(cfg):
    phases, catchup = build_phases(cfg)
    allops = sorted([(t, o, i) for (t, o, i, _) in softmax_ops(0) if t < 32], key=lambda x: (x[0], x[1]))
    catch_all = [x[2] for x in allops]

    setup = setup_code(cfg)
    pro = prologue_code(cfg, catch_all)

    top = [label("L_top")]
    top_s = [salu(f"s_cmp_lt_u32 s{sU}, 3"),
             salu(f"s_cselect_b32 s{S_Q + 2}, 16384, 0")]
    phases[0][0].pre = phases[0][0].pre + []
    top += top_s
    body_main = []
    for g, ph in enumerate(phases):
        body_main.append(raw(f"; ---- phase {g}", 'label', ws=0))
        for gp in ph:
            body_main += gp.flat()
    skipT = [salu(f"s_cmp_eq_u32 s{sU}, 3"), raw("s_cbranch_scc1 L_skipcatch", 'branch')]
    skipL = [label("L_skipcatch")]
    epi = epilogue_ops()
    chk = []
    for a in range(2):
        chk.append(valu(f"v_cmp_ngt_f32 vcc, s{sT}, v{LT + a}", [f"v{LT + a}"], ['vcc']))
        chk.append(nop(3))
        chk.append(salu(f"s_cmp_lg_u64 vcc, 0", ['vcc']))
        chk.append(salu(f"s_cselect_b32 s{sTMP}, 1, 0"))
        chk.append(salu(f"s_lshl_b32 s{sTMP}, s{sTMP}, s{sU}"))
        chk.append(salu(f"s_or_b32 s{sFAIL}, s{sFAIL}, s{sTMP}"))
    adv = [
        salu(f"s_cmp_eq_u32 s{sU}, 0"),
        salu(f"s_cselect_b32 s{sTMP}, 0, {HS * QHEAD}"),
        salu(f"s_add_u32 s{S_O}, s{S_O}, s{sTMP}"),
        salu(f"s_addc_u32 s{S_O + 1}, s{S_O + 1}, 0"),
        salu(f"s_mov_b32 s{S_O + 2}, 16384"),
        salu(f"s_add_u32 s{S_Q}, s{S_Q}, {HS * QHEAD}"),
        salu(f"s_addc_u32 s{S_Q + 1}, s{S_Q + 1}, 0"),
        salu(f"s_add_u32 s{sU}, s{sU}, 1"),
        salu(f"s_cmp_lt_u32 s{sU}, 4"),
        raw("s_cbranch_scc1 L_top", 'branch')]
    tail = [wait(l0=True)]
    for p in range(4):
        tail.append(ds_read('b128', 'a', AO + 4 * p, ORA, 1024 * p, tag=('OR', p)))
    for p in range(16):
        j, i = divmod(p, 4)
        tail.append(wait(l=[('OR', p)]))
        if p == 12:
            tail.append(salu(f"s_and_b32 s{S_O + 2}, s{S_O + 2}, s{sMASK3}"))
        tail.append(bstore('a', AO + 4 * (p % 4), VOFFP + i, S_O, f"s{sJ + j - 1}" if j else "0", 1024 * i, cfg.opol, ('o', p)))
        if p + 4 < 16:
            tail.append(nop(0))
            tail.append(ds_read('b128', 'a', AO + 4 * (p % 4), ORA, 1024 * (p + 4), tag=('OR', p + 4)))
    tail.append(wait(v0=True))
    fin = []
    if cfg.stamp:
        fin += [raw(f"s_memrealtime s[{sST + 4}:{sST + 5}]"), raw(f"s_memtime s[{sST + 6}:{sST + 7}]"), raw("s_waitcnt lgkmcnt(0)"),
                raw(f"s_sub_u32 s{sST + 6}, s{sST + 6}, s{sST + 2}"),
                raw(f"v_mov_b32 v8, s{sST}"), raw(f"v_mov_b32 v9, s{sST + 4}"), raw(f"v_mov_b32 v10, s{sST + 6}"), raw(f"v_mov_b32 v11, 0"),
                raw(f"s_add_u32 s{sST + 8}, s{sST + 8}, 268369920"), raw(f"s_addc_u32 s{sST + 9}, s{sST + 9}, 0"),
                raw(f"s_mov_b32 s{sST + 10}, 65536"), raw(f"s_mov_b32 s{sST + 11}, 0x20000"),
                raw(f"s_lshl_b32 s{sTMP}, s2, 4"), raw(f"v_mov_b32 v12, s{sTMP}"),
                raw(f"s_cmp_lg_u32 s{sW}, 0"), raw("s_cbranch_scc1 L_nostamp"),
                raw(f"buffer_store_dwordx4 v[8:11], v12, s[{sST + 8}:{sST + 11}], 0 offen"), raw("s_waitcnt vmcnt(0)"),
                raw("L_nostamp:", 'label', 0)]
    slow = slow_path(cfg) if cfg.slow else []
    end = [label("L_done"), label("L_end"), raw("s_endpgm")]

    body_first = top + body_main + skipT + catchup + skipL + epi + chk + adv
    body_last = top + body_main + skipT + skipL + epi + chk + adv
    path1 = setup + pro + body_first + body_first + body_last + tail
    res = resolve_waits([path1])
    allseq = setup + pro + body_first + tail + fin + slow + end
    apply_waits(allseq, res)

    probs = check_hazards(path1, "main") + check_dataflow(path1, "main")
    if slow:
        probs += check_hazards(slow + slow, "slow")
    for p in probs[:40]:
        print("PROBLEM", p, file=sys.stderr)
    if probs:
        print(f"{len(probs)} problems", file=sys.stderr)

    rep = []
    for g, ph in enumerate(phases):
        c = [gp.cost() for gp in ph]
    print("\n".join(rep), file=sys.stderr)

    hdr = open('standalone__mha_softmax__near_ridge.s.ref').read().split('; Override launch')[0]
    txt = hdr
    txt += "; Override launch geometry by editing the next line (default: block=256,\n"
    txt += "; @launch grid=(256,1,1) block=(256,1,1) lds=163840\n"
    txt += '.amdgcn_target "amdgcn-amd-amdhsa--gfx950"\n.text\n'
    txt += f".globl {NAME}\n.p2align 8\n.type {NAME},@function\n{NAME}:\n"
    seq_pre = setup + pro
    txt += text_of(seq_pre)
    txt += ".p2align 6\n"
    txt += text_of(body_first + tail + fin + slow + end)
    txt += f""".section .rodata,"a"
.p2align 6
.amdhsa_kernel {NAME}
  .amdhsa_next_free_vgpr {256 + NUM_AGPR}
  .amdhsa_next_free_sgpr 96
  .amdhsa_accum_offset 256
  .amdhsa_group_segment_fixed_size 0
  .amdhsa_kernarg_size 48
  .amdhsa_user_sgpr_count 2
  .amdhsa_user_sgpr_kernarg_segment_ptr 1
  .amdhsa_system_sgpr_workgroup_id_x 1
  .amdhsa_float_denorm_mode_32 3
.end_amdhsa_kernel
"""
    return txt, len(probs)


if __name__ == "__main__":
    ap = argparse.ArgumentParser()
    ap.add_argument('-o', default='standalone__mha_softmax__near_ridge.s')
    ap.add_argument('--kvpol', default='nt')
    ap.add_argument('--qpol', default='nt')
    ap.add_argument('--opol', default='nt')
    ap.add_argument('--stamp', action='store_true')
    ap.add_argument('--thr', type=float, default=None)
    args = ap.parse_args()
    cfg = Cfg()
    cfg.kvpol, cfg.qpol, cfg.opol = args.kvpol.replace('def', ''), args.qpol.replace('def', ''), args.opol.replace('def', '')
    cfg.stamp = args.stamp
    txt, n = generate(cfg)
    open(args.o, 'w').write(txt)
    print(f"wrote {args.o}: {len(txt)} bytes, {n} problems", file=sys.stderr)
```
